```python
import torch

def _softmax(x, axis=-1):
    return torch.softmax(x, dim=axis)

def _gelu(x):
    return torch.nn.functional.gelu(x, approximate='tanh')

def _silu(x):
    return torch.nn.functional.silu(x)

def _sigmoid(x):
    return torch.sigmoid(x)

def _layernorm(x, axis=-1, eps=1e-05):
    m = x.mean(dim=axis, keepdim=True)
    v = x.var(dim=axis, keepdim=True, unbiased=False)
    return (x - m) / torch.sqrt(v + eps)

def _scatter_add(tgt, idx, src, axis=0):
    return tgt.clone().index_add_(axis, idx, src)

def _segment_sum(src, seg, n):
    out = torch.zeros((n,) + src.shape[1:], dtype=src.dtype)
    return out.index_add_(0, seg, src)

def _pad(x, pw):
    flat = tuple((v for pair in reversed(pw) for v in pair))
    return torch.nn.functional.pad(x, flat)
kernel_name = 'concat_heads__sliding_block__memory_aug_recurrent_mem_tr__prompt'

def setup_inputs():

    _w = lambda a: (lambda t: t.to(torch.bfloat16) if t.is_floating_point() else t)(torch.as_tensor(a))

    def _A_setup():
        B, S, D = (1, 2048, 640)
        return {'x': _w((lambda *s: torch.randn(*s, dtype=torch.bfloat16) * 0.2)(B, S, D)), 'wqkv': _w((lambda *s: torch.randn(*s, dtype=torch.bfloat16) * 0.2)(D, 3 * D)), 'wo': _w((lambda *s: torch.randn(*s, dtype=torch.bfloat16) * 0.05)(D, D))}
    _A_in = _A_setup()

    def _B_setup():
        B, S, Dm = (1, 2048, 640)
        H, Dh = (32, 128)
        M, seg = (8, 32)
        seg = min(seg, S)
        S = S // seg * seg
        return {'x': _w((lambda *s: torch.randn(*s, dtype=torch.bfloat16) * 0.05)(B, S, Dm)), 'mem0': _w((lambda *s: torch.randn(*s, dtype=torch.bfloat16) * 1.6)(B, M, Dm)), 'Wq': _w((lambda *s: torch.randn(*s, dtype=torch.bfloat16) * 0.8)(Dm, H, Dh) * Dm ** (-0.5)), 'Wk': _w((lambda *s: torch.randn(*s, dtype=torch.bfloat16) * 0.8)(Dm, H, Dh) * Dm ** (-0.5)), 'Wv': _w((lambda *s: torch.randn(*s, dtype=torch.bfloat16) * 1.6)(Dm, H, Dh) * Dm ** (-0.5)), 'Wo': _w((lambda *s: torch.randn(*s, dtype=torch.bfloat16) * 1.6)(H, Dh, Dm) * (H * Dh) ** (-0.5)), 'seg_len': seg}
    _B_in = _B_setup()
    return {'A_x': _A_in['x'], 'A_wqkv': _A_in['wqkv'], 'A_wo': _A_in['wo'], 'B_x': _B_in['x'], 'B_mem0': _B_in['mem0'], 'B_Wq': _B_in['Wq'], 'B_Wk': _B_in['Wk'], 'B_Wv': _B_in['Wv'], 'B_Wo': _B_in['Wo'], 'B_seg_len': _B_in['seg_len']}

def reference(A_x, A_wqkv, A_wo, B_x, B_mem0, B_Wq, B_Wk, B_Wv, B_Wo, B_seg_len):

    def _A_ref(x, wqkv, wo):
        B, S, D = x.shape
        H = 32
        Dh = D // H
        W = 256
        qkv = (lambda x, *d: x.permute(*d))((x @ wqkv).reshape(B, S, 3, H, Dh), 2, 0, 3, 1, 4)
        q, k, v = (qkv[0], qkv[1], qkv[2])
        scores = torch.einsum('bhqd,bhkd->bhqk', q, k) * Dh ** (-0.5)
        idx = torch.arange(S)
        mask = (idx[:, None] - idx[None, :] >= 0) & (idx[:, None] - idx[None, :] < W)
        scores = torch.where(mask[None, None], scores, -1000000000.0)
        p = _softmax(scores, axis=-1)
        o = torch.einsum('bhqk,bhkd->bhqd', p, v)
        return (lambda x, *d: x.permute(*d))(o, 0, 2, 1, 3).reshape(B, S, D) @ wo

    def _B_ref(x, mem0, Wq, Wk, Wv, Wo, seg_len):
        B, S, Dm = x.shape
        H, Dh = (Wq.shape[1], Wq.shape[2])
        M = mem0.shape[1]
        scale = Dh ** (-0.5)
        n_seg = S // seg_len
        L = M + seg_len
        idx = torch.arange(L)
        mask = (idx[:, None] < M) | (idx[:, None] >= idx[None, :])
        mem = mem0
        outs = []
        for s in range(n_seg):
            xs = x[:, s * seg_len:(s + 1) * seg_len, :].clone()
            h = torch.concatenate([mem, xs], axis=1)
            q = torch.einsum('btd,dhe->bhte', h, Wq)
            k = torch.einsum('btd,dhe->bhte', h, Wk)
            v = torch.einsum('btd,dhe->bhte', h, Wv)
            scores = torch.einsum('bhqe,bhke->bhqk', q, k) * scale
            scores = torch.where(mask[None, None], scores, -1000000000.0)
            p = _softmax(scores, axis=-1)
            o = torch.einsum('bhqk,bhke->bhqe', p, v)
            o = torch.einsum('bhte,hed->btd', o, Wo)
            mem = o[:, :M, :].clone()
            outs.append(o[:, M:, :])
        return torch.concatenate(outs, axis=1)
    a = _A_ref(A_x, A_wqkv, A_wo)
    b = _B_ref(B_x, B_mem0, B_Wq, B_Wk, B_Wv, B_Wo, B_seg_len)
    return torch.concatenate([a, b], axis=-1)
```

```python
class Asm:
    def __init__(self):
        self.lines=[]
        self.uid=0
    def __call__(self, s=""):
        for l in s.split("\n"):
            self.lines.append("  "+l.strip() if l.strip() and not l.strip().endswith(":") else l.strip())
    def lab(self, base="L"):
        self.uid+=1
        return f"{base}_{self.uid}"
    def label(self, name):
        self.lines.append(name+":")
    def text(self):
        return "\n".join(self.lines)+"\n"

def vr(a,n=1):
    return f"v{a}" if n==1 else f"v[{a}:{a+n-1}]"
def ar(a,n=1):
    return f"a{a}" if n==1 else f"a[{a}:{a+n-1}]"
def sr(a,n=1):
    return f"s{a}" if n==1 else f"s[{a}:{a+n-1}]"

def kernel_wrap(name, body, vgpr=512, accum=256, sgpr=100, kernarg=104, meta=True, wg=256):
    s = f""".amdgcn_target "amdgcn-amd-amdhsa--gfx950"
.text
.globl {name}
.p2align 8
.type {name},@function
{name}:
{body}
.section .rodata,"a"
.p2align 6
.amdhsa_kernel {name}
  .amdhsa_next_free_vgpr {vgpr}
  .amdhsa_next_free_sgpr {sgpr}
  .amdhsa_accum_offset {accum}
  .amdhsa_group_segment_fixed_size 0
  .amdhsa_kernarg_size {kernarg}
  .amdhsa_user_sgpr_count 2
  .amdhsa_user_sgpr_kernarg_segment_ptr 1
  .amdhsa_system_sgpr_workgroup_id_x 1
.end_amdhsa_kernel
"""
    if meta:
        s += f""".amdgpu_metadata
---
amdhsa.version: [1, 2]
amdhsa.kernels:
  - .name: {name}
    .symbol: {name}.kd
    .kernarg_segment_size: {kernarg}
    .kernarg_segment_align: 8
    .group_segment_fixed_size: 0
    .private_segment_fixed_size: 0
    .wavefront_size: 64
    .sgpr_count: {sgpr}
    .vgpr_count: {vgpr}
    .max_flat_workgroup_size: {wg}
    .args:
      - {{.name: kernargs, .size: {kernarg}, .offset: 0, .value_kind: by_value}}
...
.end_amdgpu_metadata
"""
    return s
```

```python
import re
REG=re.compile(r'^(-|abs\()?([vas])(\d+)\)?$')
RNG=re.compile(r'^(-|abs\()?([vas])\[(\d+):(\d+)\]\)?$')
def regs(op):
    op=op.strip()
    m=REG.match(op)
    if m: return {(m.group(2),int(m.group(3)))}
    m=RNG.match(op)
    if m: return {(m.group(2),i) for i in range(int(m.group(3)),int(m.group(4))+1)}
    if op=='vcc': return {('s','vcc')}
    if op in('vcc_lo','vcc_hi'): return {('s','vcc')}
    if op=='m0': return {('s','m0')}
    if op in('exec','exec_lo','exec_hi'): return {('s','exec')}
    return set()
TRANS=('v_exp_','v_log_','v_rcp_','v_rsq_','v_sqrt_','v_sin_','v_cos_')
class I: pass
def parse(line):
    s=line.split(';')[0].strip()
    if not s or s.endswith(':') or s.startswith('.'): return None
    p=s.split(None,1); op=p[0]; rest=p[1] if len(p)>1 else ''
    ops=[]; cur=''; d=0
    for ch in rest:
        if ch=='[': d+=1
        if ch==']': d-=1
        if ch==',' and d==0: ops.append(cur.strip()); cur=''
        else: cur+=ch
    if cur.strip(): ops.append(cur.strip())
    mods=''
    if ops:
        t=ops[-1].split(None,1)
        ops[-1]=t[0]
        if len(t)>1: mods=t[1]
    i=I(); i.op=op; i.ops=ops; i.mods=mods; i.w=set(); i.r=set(); i.kind='salu'; i.c=set(); i.ab=set(); i.data=set()
    i.states=1
    if op=='s_nop': i.states=int(ops[0])+1
    R=[regs(o) for o in ops]
    if op.startswith('v_mfma') or op.startswith('v_smfmac'):
        i.kind='mfma'; i.w=R[0]
        if op.startswith('v_smfmac'): i.c=R[0]; i.ab=R[1]|R[2]|R[3]
        else: i.c=R[3]; i.ab=R[1]|R[2]
        i.r=i.c|i.ab
        i.passes=8 if '32x32' in op else 4
    elif op.startswith('v_'):
        i.kind='valu'
        i.trans=op.startswith(TRANS)
        i.dpp=('dpp' in op) or ('row_' in mods) or ('quad_perm' in mods)
        i.perm=op.startswith('v_permlane')
        if i.perm: i.w=R[0]|R[1]; i.r=R[0]|R[1]
        elif op.startswith('v_cmp'):
            i.w=R[0]; i.r=set().union(*R[1:])
        elif op.startswith(('v_add_co','v_sub_co','v_addc_co','v_subb_co')):
            i.w=R[0]|R[1]; i.r=set().union(*R[2:])
        else:
            i.w=R[0]; i.r=set().union(*R[1:]) if len(R)>1 else set()
            if op.startswith(('v_fmac','v_pk_fmac','v_mac','v_dot2c')) or i.dpp: i.r|=R[0]
            if op.startswith('v_cndmask') and len(ops)==3: i.r|={('s','vcc')}
        i.lane=op.startswith(('v_readfirstlane','v_readlane'))
    elif op.startswith('ds_'):
        i.kind='ds'
        if op.startswith(('ds_read','ds_bpermute','ds_permute','ds_swizzle')) or '_rtn' in op: i.w=R[0]; i.r=set().union(*R[1:])
        else: i.r=set().union(*R)
    elif op.startswith(('buffer_','global_')):
        i.kind='vmem'; i.lds=(' lds' in ' '+mods) or ('_lds_' in op)
        if op in('buffer_inv','buffer_wbl2'): pass
        elif 'load' in op and not i.lds: i.w=R[0]; i.r=set().union(*R[1:])
        elif 'atomic' in op and 'sc0' in mods.split() and op.startswith('global'): i.w=R[0]; i.r=set().union(*R[1:])
        elif 'atomic' in op and 'sc0' in mods.split(): i.w=R[0]; i.r=set().union(*R)
        else:
            i.r=set().union(*R)
            if 'store' in op and ('x4' in op or 'x3' in op):
                i.data = R[0] if op.startswith('buffer') else R[1]
        if i.lds: i.r|={('s','m0')}
    else:
        i.kind='salu'
        if R and not op.startswith(('s_cmp','s_cbranch','s_branch','s_waitcnt','s_barrier','s_sleep','s_endpgm','s_setprio','s_bitcmp')):
            i.w=R[0]; i.r=set().union(*R[1:]) if len(R)>1 else set()
    return i
def isv(s): return {x for x in s if x[0] in 'va'}
def iss(s): return {x for x in s if x[0]=='s'}
def need(p,c):
    n=0
    if p.kind=='valu':
        wv=isv(p.w); ws=iss(p.w)
        if c.kind=='mfma' and wv&c.r: n=max(n,2)
        if c.kind=='valu':
            if p.trans and not c.trans and wv&c.r: n=max(n,1)
            if (c.dpp or c.perm) and wv&c.r: n=max(n,2)
            if c.lane and wv&c.r: n=max(n,1)
            if ws&c.r: n=max(n,4 if c.op.startswith(('v_readlane','v_writelane')) else 2)
        if c.kind=='vmem' and ws&c.r: n=max(n,5)
        if c.kind=='salu' and ws&c.r and ('s','vcc') not in (ws&c.r): n=max(n,1)
    if p.kind=='mfma':
        far=12 if p.passes==8 else 8
        if c.kind in('valu','ds','vmem') and p.w&(c.r|c.w): n=max(n,far)
        if c.kind=='mfma':
            if p.w&c.ab: n=max(n,far)
            if p.w&c.c and not (p.w==c.c and p.passes==c.passes): n=max(n,far-2)
            if p.w&c.w and not (p.w&c.c): n=max(n,far-2)
        if c.kind=='valu' and p.c&c.w: n=max(n,7 if p.passes==8 else 3)
    if p.kind=='salu' and ('s','m0') in p.w and c.kind=='vmem' and c.lds: n=max(n,1)
    if p.kind=='vmem' and p.data:
        if c.kind=='valu' and p.data&c.w: n=max(n,2)
        elif p.data&c.w: n=max(n,1)
    return n
def fix(text, verbose=False):
    out=[]; hist=[]
    ins=0
    for line in text.split('\n'):
        c=parse(line)
        if c is None:
            out.append(line); continue
        req=0; dist=0
        for p in reversed(hist):
            n=need(p,c)
            if n-dist>req: req=n-dist
            dist+=p.states
            if dist>=12: break
        if req>0:
            out.append(f"  s_nop {req-1}"); ins+=1
            q=parse(f"s_nop {req-1}"); hist.append(q)
        out.append(line); hist.append(c)
        if len(hist)>16: hist=hist[-16:]
        if c.op in('s_branch','s_endpgm','s_setpc_b64'): hist=[]
    return '\n'.join(out)
```

```python
import math, struct
def f2u(x): return struct.unpack('<I',struct.pack('<f',x))[0]
def emit(a,cfg,G):
    S_WS=G.S_WS; W=G.sWAVE; IDX=G.sIDX
    a("s_cmp_eq_u32 s84, 1\ns_cbranch_scc1 L_exit")
    if cfg.get('noa'):
        a("s_endpgm"); return
    G.wait_all_arrived(a)
    KB=64; QB=144; SB=160; PB=24; OB=228
    sc=20**-0.5*math.log2(math.e)
    a(f"""
    v_lshrrev_b32 v22, 4, v1            ; g
    v_and_b32 v23, 15, v1               ; c
    v_lshlrev_b32 v2, 4, v1             ; lane*16
    v_mov_b32 v16, {hex(f2u(sc))}
    v_mov_b32 v17, v16
    v_mov_b32 v60, {hex(f2u(-1e30))}
    v_cmp_eq_u32 vcc, 1, v22
    v_mov_b32 v61, 0xff7f
    v_cndmask_b32 v3, 0, v61, vcc
    v_mov_b32 v61, 0x3f80
    v_cndmask_b32 v4, 0, v61, vcc
    v_mul_u32_u24 v5, 1280, v23
    v_lshl_add_u32 v5, v22, 3, v5
    v_lshlrev_b32 v6, 10, v1
    """)
    for i in range(4):
        a(f"""v_lshl_add_u32 v61, v22, 2, {i}
        v_cmp_le_u32 vcc, v61, v23
        v_cndmask_b32 v{8+i}, v60, 0, vcc
        v_cndmask_b32 v{12+i}, 0, v60, vcc""")
    a(f"s_mov_b32 s85, s{IDX}")
    a.label("L_a2item")
    a(f"""s_and_b32 s86, s85, 7
    s_lshr_b32 s87, s85, 3
    s_lshl_b32 s89, s86, 7
    s_add_u32 s89, s89, {G.FL_PW+96*128}
    """)
    G.spin_ge(a,"v6",S_WS,"s89","4",12,62)
    a(f"""s_lshl_b32 s86, s86, 2
    s_add_u32 s86, s86, s{W}             ; head
    s_lshl_b32 s89, s86, 17
    s_lshl_b32 s90, s87, 2               ; qt0
    s_lshl_b32 s91, s90, 10
    s_add_u32 s91, s91, s89
    s_add_u32 s92, s91, {G.OFF_QA}
    """)
    for u in range(4):
        a(f"buffer_load_dwordx4 v[{QB+4*u}:{QB+4*u+3}], v2, s[{S_WS}:{S_WS+3}], s92 offen offset:{u*1024} sc1")
    for j in range(20):
        a(f"""s_add_u32 s92, s91, {G.OFF_KA+(j-16)*1024}
        s_cmp_ge_u32 s90, {16-j}
        s_cselect_b32 s92, s92, 0x7ff00000""" if j<16 else f"s_add_u32 s92, s91, {G.OFF_KA+(j-16)*1024}")
        a(f"buffer_load_dwordx4 v[{KB+4*j}:{KB+4*j+3}], v2, s[{S_WS}:{S_WS+3}], s92 offen sc1")
    for p in range(10):
        a(f"""s_add_u32 s92, s91, {G.OFF_VA+(2*p-16)*1024}
        s_cmp_ge_u32 s90, {16-2*p}
        s_cselect_b32 s92, s92, 0x7ff00000""" if p<8 else f"s_add_u32 s92, s91, {G.OFF_VA+(2*p-16)*1024}")
        for t in range(2):
            a(f"buffer_load_dwordx4 a[{8*p+4*t}:{8*p+4*t+3}], v2, s[{S_WS}:{S_WS+3}], s92 offen offset:{t*1024} sc1")
    a("s_waitcnt vmcnt(20)")
    for u in range(4): a(f"v_or_b32 v{QB+4*u+2}, v4, v{QB+4*u+2}")
    for j in range(16):
        a(f"s_cmp_lt_u32 s90, {16-j}\ns_cselect_b32 s92, -1, 0\nv_and_or_b32 v{KB+4*j+2}, v3, s92, v{KB+4*j+2}")
    a(f"""s_mul_i32 s93, s87, {64*1280}
    s_mul_i32 s92, s86, 40
    s_add_u32 s93, s93, s92
    s_add_u32 s93, s93, {G.OFF_OA}""")
    for u in range(4):
        for jj in range(17):
            j=u+jj
            c = "v[12:15]" if jj==0 else ("v[8:11]" if jj==16 else "0")
            a(f"v_mfma_f32_16x16x32_bf16 v[{SB+4*jj}:{SB+4*jj+3}], v[{KB+4*j}:{KB+4*j+3}], v[{QB+4*u}:{QB+4*u+3}], {c}")
        a(f"v_max3_f32 v62, v{SB}, v{SB+1}, v{SB+2}\nv_max3_f32 v63, v{SB+3}, v{SB+4}, v{SB+5}")
        r=SB+6; k=0
        while r<SB+68:
            a(f"v_max3_f32 v{62+k}, v{62+k}, v{r}, v{r+1}"); r+=2; k^=1
        a("""v_max_f32 v62, v62, v63
        v_mov_b32 v63, v62
        v_permlane16_swap_b32 v62, v63
        v_max_f32 v62, v62, v63
        v_mov_b32 v63, v62
        v_permlane32_swap_b32 v62, v63
        v_max_f32 v62, v62, v63
        v_mul_f32 v62, v16, v62
        v_sub_f32 v62, 0, v62
        v_mov_b32 v63, v62""")
        for r in range(SB,SB+68,2):
            a(f"v_pk_fma_f32 v[{r}:{r+1}], v[{r}:{r+1}], v[16:17], v[62:63]")
        for r in range(SB,SB+68): a(f"v_exp_f32 v{r}, v{r}")
        z = 17 if u%2==0 else 0
        a(f"v_mov_b32 v{PB+2*z}, 0\nv_mov_b32 v{PB+2*z+1}, 0")
        for jj in range(17):
            pj=jj+(u&1)
            a(f"v_cvt_pk_bf16_f32 v{PB+2*pj}, v{SB+4*jj}, v{SB+4*jj+1}\nv_cvt_pk_bf16_f32 v{PB+2*pj+1}, v{SB+4*jj+2}, v{SB+4*jj+3}")
        if u==0: a("s_waitcnt vmcnt(0)")
        for q in range(9):
            p=(u>>1)+q
            for t in range(2):
                c="0" if q==0 else f"v[{OB+4*t}:{OB+4*t+3}]"
                a(f"v_mfma_f32_16x16x32_bf16 v[{OB+4*t}:{OB+4*t+3}], a[{8*p+4*t}:{8*p+4*t+3}], v[{PB+4*q}:{PB+4*q+3}], {c}")
        a(f"""v_mov_b32 v62, v{OB+4}
        v_mov_b32 v63, v{OB+4}
        v_permlane16_swap_b32 v62, v63
        v_mov_b32 v62, v63
        v_permlane32_swap_b32 v62, v63
        v_rcp_f32 v62, v62""")
        for i in range(8): a(f"v_mul_f32 v{OB+i}, v62, v{OB+i}")
        o=236+4*(u&1)
        for i in range(4): a(f"v_cvt_pk_bf16_f32 v{o+i}, v{OB+2*i}, v{OB+2*i+1}")
        a(f"""buffer_store_dwordx2 v[{o}:{o+1}], v5, s[{S_WS}:{S_WS+3}], s93 offen sc1
        s_mov_b64 exec, 0xffff
        buffer_store_dwordx2 v[{o+2}:{o+3}], v5, s[{S_WS}:{S_WS+3}], s93 offen offset:32 sc1
        s_mov_b64 exec, -1
        s_add_u32 s93, s93, {16*1280}""")
    a(f"""s_waitcnt vmcnt(0)
    s_barrier
    s_cmp_lg_u32 s{W}, 0
    s_cbranch_scc1 L_a2n
    s_lshr_b32 s92, s87, 1
    s_lshl_b32 s92, s92, 7
    s_add_u32 s92, s92, {G.FL_A2}
    s_mov_b64 exec, 1
    v_mov_b32 v62, 0
    v_mov_b32 v63, 1
    buffer_atomic_add v63, v62, s[{S_WS}:{S_WS+3}], s92 offen sc1
    s_mov_b64 exec, -1
    L_a2n:
    s_add_u32 s85, s85, 96
    s_cmp_lt_u32 s85, 256
    s_cbranch_scc1 L_a2item
    """)
    S_X=G.S_X; S_W=G.S_W; S_ST=G.S_ST
    a(f"""s_cmp_ge_u32 s{IDX}, 80
    s_cbranch_scc1 L_exit
    s_mul_i32 s86, s{IDX}, 52429
    s_lshr_b32 s86, s86, 18
    s_mul_i32 s87, s86, 5
    s_sub_u32 s87, s{IDX}, s87
    s_add_u32 s{S_X}, s28, {G.OFF_OA}
    s_addc_u32 s{S_X+1}, s29, 0
    s_mul_i32 s68, s86, {128*1280}
    s_add_u32 s{S_X+2}, s68, {128*1280}
    s_mov_b32 s{S_W}, s8
    s_mov_b32 s{S_W+1}, s9
    s_mov_b32 s{S_W+2}, {640*1280}
    s_mov_b32 s{S_ST}, s24
    s_mov_b32 s{S_ST+1}, s25
    s_mov_b32 s{S_ST+2}, {2048*2560}
    s_movk_i32 s60, 1280
    s_lshl_b32 s61, s87, 8
    s_mov_b32 s62, 64
    s_mov_b32 s63, 8
    s_mov_b32 s64, 16
    s_mul_i32 s65, s86, {128*2560}
    s_add_u32 s65, s65, s61
    s_lshl_b32 s70, s{W}, 6
    s_add_u32 s65, s65, s70
    s_mov_b32 s66, {32*2560}
    s_mov_b32 s67, {16*2560}
    s_mov_b32 s69, 1
    s_mov_b32 s59, 0
    s_mov_b32 s84, 1
    v_mov_b32 v21, 0x7ff00000
    v_lshrrev_b32 v22, 4, v1
    v_and_b32 v23, 15, v1
    v_mul_u32_u24 v18, 2560, v23
    v_lshl_add_u32 v18, v22, 4, v18
    """)
    G.pw_setup(a)
    G.pw_loadw(a)
    def xwait():
        a(f"s_lshl_b32 s92, s86, 7\ns_add_u32 s92, s92, {G.FL_A2}\nv_mov_b32 v62, 0")
        G.spin_ge(a,"v62",S_WS,"s92","16",1,63)
    G.pw_readw(a,xwait)
    a("s_branch L_pwT")
```

```python
import math, struct
def f2u(x): return struct.unpack('<I',struct.pack('<f',x))[0]
OOB="0x7ff00000"
class Cnt:
    def __init__(s,a,name,mx): s.a=a; s.n=name; s.q=[]; s.mx=mx
    def issue(s,tag): s.q.append(tag)
    def wait(s,tag):
        if tag not in s.q: return
        i=len(s.q)-1-s.q[::-1].index(tag)
        n=len(s.q)-1-i
        s.a(f"s_waitcnt {s.n}({min(n,s.mx)})")
        if n<=s.mx: s.q=s.q[i+1:]
        else: s.q=s.q[len(s.q)-s.mx:]
def delay(a,clks):
    while clks>=64: a("s_nop 15"); clks-=64
    if clks>=4: a(f"s_nop {clks//4-1}")

def get_parity(a,G,tmpv):
    a(f"v_mov_b32 v{tmpv+1}, 128")
    G.spin_ge(a,f"v{tmpv+1}",G.S_DB,"0","1",1,tmpv,sleep=2)
    a(f"v_readfirstlane_b32 s62, v{tmpv}\ns_and_b32 s62, s62, 2\ns_lshl_b32 s62, s62, 12")

def pollflag(a,G,voff,soff,tag,va,vb):
    CM=G.S_CM; l1=a.lab("PF"); l2=a.lab("PD"); l3=a.lab("PO")
    a(f"""s_cmp_lg_u32 s{G.sWAVE}, 0
    s_cbranch_scc1 {l3}
    s_mov_b64 exec, 15
    s_mov_b32 s70, 0
    buffer_load_dword v{va}, {voff}, s[{CM}:{CM+3}], {soff} offen sc1
    s_nop 15
    s_nop 7""")
    a.label(l1)
    a(f"""buffer_load_dword v{vb}, {voff}, s[{CM}:{CM+3}], {soff} offen sc1
    s_waitcnt vmcnt(1)
    v_cmp_gt_u32 vcc, {tag}, v{va}
    s_cbranch_vccz {l2}
    buffer_load_dword v{va}, {voff}, s[{CM}:{CM+3}], {soff} offen sc1
    s_waitcnt vmcnt(1)
    v_cmp_gt_u32 vcc, {tag}, v{vb}
    s_cbranch_vccz {l2}
    s_add_u32 s70, s70, 1
    s_cmp_lt_u32 s70, {G.SPIN}
    s_cbranch_scc1 {l1}
    s_endpgm""")
    a.label(l3)
    a("s_waitcnt vmcnt(0)")
    a.label(l2)
    a("s_mov_b64 exec, -1\ns_barrier")

def team2(a,cfg,G):
    W=G.sWAVE; CM=G.S_CM; SW=G.S_W; SX=G.S_X
    f2=cfg.get('f2',6); pace2=cfg.get('pace2',48)
    a.label("L_team2")
    a(f"""s_sub_u32 s60, s31, 32
    s_and_b32 s61, s60, 3                ; x
    s_lshr_b32 s60, s60, 2               ; a
    s_mul_i32 s63, s61, 10
    s_lshr_b32 s64, s60, 1
    s_add_u32 s63, s63, s64
    s_and_b32 s64, s60, 1
    s_mov_b32 s{SW}, s20
    s_mov_b32 s{SW+1}, s21
    s_mov_b32 s{SW+2}, {4096*1280}
    s_mov_b32 s{SX}, s12
    s_mov_b32 s{SX+1}, s13
    s_mov_b32 s{SX+2}, 10240
    v_lshrrev_b32 v2, 1, v1
    v_mul_u32_u24 v2, 1280, v2
    v_and_b32 v3, 1, v1
    v_lshl_add_u32 v2, v3, 4, v2
    s_mul_i32 s65, s{W}, {1024*1280}
    s_lshl_b32 s66, s63, 5
    s_add_u32 s65, s65, s66
    s_lshl_b32 s66, s{W}, 15
    s_lshl_b32 s67, s63, 1
    s_add_u32 s67, s67, s64
    s_lshl_b32 s67, s67, 7
    s_and_b32 s68, s67, 0x2000
    s_add_u32 s67, s67, s68
    s_add_u32 s67, s67, {8*16384}
    v_and_b32 v4, 3, v1
    s_lshl_b32 s68, s64, 2
    v_add_u32 v4, s68, v4
    v_mul_u32_u24 v4, 1280, v4
    v_and_b32 v5, 4, v1
    v_lshl_add_u32 v4, v5, 2, v4
    s_lshl_b32 s68, s63, 5
    v_add_u32 v4, s68, v4
    buffer_load_dwordx4 v[8:11], v4, s[{SX}:{SX+3}], 0 offen
    v_lshrrev_b32 v5, 3, v1
    v_lshlrev_b32 v5, 18, v5
    v_and_b32 v6, 7, v1
    v_lshl_add_u32 v5, v6, 4, v5
    s_and_b32 s68, s{W}, 1
    s_lshl_b32 s68, s68, 13
    s_add_u32 s69, s67, s68
    v_cmp_gt_u32 vcc, 8, v1
    s_waitcnt vmcnt(0)
    """)
    for i in range(4): a(f"v_min_u32 v{8+i}, -2, v{8+i}\nv_cndmask_b32 v{8+i}, -1, v{8+i}, vcc")
    a(f"""buffer_store_dwordx4 v[8:11], v5, s[{CM}:{CM+3}], s69 offen sc1
    s_lshl_b32 s69, s61, 7
    s_add_u32 s69, s69, {11*16384}
    s_cmp_eq_u32 s60, 0
    s_cselect_b32 s72, s69, {OOB}
    s_add_u32 s69, s72, s68
    v_mov_b32 v12, 0
    v_mov_b32 v13, 1
    s_mov_b64 exec, 1
    buffer_store_dword v13, v12, s[{CM}:{CM+3}], s69 offen sc1
    s_mov_b64 exec, -1
    s_cmp_eq_u32 s{W}, 0
    s_cselect_b32 s72, s72, {OOB}
    """)
    G.arrive(a)
    for i in range(32):
        a(f"""s_add_u32 m0, s66, {i*1024}
        s_nop 0
        buffer_load_dwordx4 v2, s[{SW}:{SW+3}], s65 offen lds
        s_add_u32 s65, s65, {32*1280}""")
    a(f"""v_lshrrev_b32 v22, 4, v1             ; g
    v_and_b32 v23, 15, v1                ; c
    v_lshrrev_b32 v24, 2, v23            ; r'
    v_and_b32 v25, 1, v22
    v_lshlrev_b32 v25, 4, v25
    v_lshrrev_b32 v26, 1, v22
    v_lshl_add_u32 v25, v26, 3, v25
    v_lshrrev_b32 v26, 1, v24
    v_lshl_add_u32 v25, v26, 2, v25
    v_and_b32 v26, 1, v24
    v_add_u32 v25, v25, v26
    v_lshlrev_b32 v25, 5, v25
    v_and_b32 v26, 3, v1
    v_lshl_add_u32 v25, v26, 3, v25
    v_add_u32 v25, s66, v25
    v_lshrrev_b32 v26, 3, v23
    v_lshlrev_b32 v26, 1, v26
    v_lshrrev_b32 v27, 1, v22
    v_add_u32 v26, v26, v27
    v_lshlrev_b32 v26, 8, v26
    v_and_b32 v27, 1, v22
    v_lshlrev_b32 v27, 7, v27
    v_add_u32 v26, v26, v27
    v_and_b32 v27, 7, v23
    v_lshl_add_u32 v26, v27, 4, v26
    s_lshl_b32 s68, s64, 2
    s_add_u32 s68, s68, s{W}
    s_lshl_b32 s68, s68, 14
    v_add_u32 v2, s68, v26
    v_add_u32 v3, 4096, v2
    v_and_b32 v27, 4, v23
    v_cmp_eq_u32 vcc, 0, v27
    v_mov_b32 v27, 0xeeee
    v_mov_b32 v28, 0x4444
    v_cndmask_b32 v6, v27, v28, vcc
    v_lshlrev_b32 v7, 7, v1
    v_lshlrev_b32 v4, 4, v1
    s_lshl_b32 s68, s{W}, 2
    v_add_u32 v5, s68, v4
    v_and_b32 v27, 1, v22
    v_lshlrev_b32 v27, 1, v27
    v_lshrrev_b32 v28, 1, v22
    v_add_u32 v27, v27, v28
    v_lshrrev_b32 v28, 3, v23
    v_lshl_add_u32 v27, v28, 2, v27
    v_lshlrev_b32 v27, 4, v27
    v_and_b32 v28, 7, v23
    v_lshl_add_u32 v8, v28, 1, v27
    v_mov_b32 v12, 0
    v_mov_b32 v16, -1
    v_mov_b32 v17, -1
    v_mov_b32 v18, -1
    v_mov_b32 v19, -1
    s_mov_b32 s74, 0
    s_mov_b32 s75, -1
    s_mov_b32 s76, 0x55555555
    s_mov_b32 s77, 0x55555555
    s_waitcnt vmcnt(0)
    """)
    for hl in range(8):
        for sel in range(2):
            for hb in range(2):
                for sec in range(2):
                    r=(hl*2+sel)*8+4*hb+2*sec
                    a(f"ds_read_b64_tr_b16 a[{r}:{r+1}], v25 offset:{(hl*128+64*sel+32*hb+2*sec)*32}")
        a("s_waitcnt lgkmcnt(0)")
    G.wait_all_arrived(a,tmpv=20)
    get_parity(a,G,20)
    a(f"""s_add_u32 s72, s72, s62
    s_add_u32 s73, s62, {10*16384}
    s_add_u32 s67, s67, s62
    s_mov_b32 s60, 0
    s_barrier""")
    a.label("L_t2loop")
    a(f"""s_and_b32 s63, s60, 7
    s_lshl_b32 s63, s63, 18
    s_add_u32 s63, s63, s62              ; o slot
    s_add_u32 s64, s60, 1
    s_and_b32 s65, s64, 7
    s_lshl_b32 s65, s65, 18
    s_add_u32 s65, s65, s67
    s_add_u32 s66, s60, 2
    v_mov_b32 v13, s66""")
    for i in range(8): a(f"v_mov_b32 v{64+i}, 0")
    a("v_mov_b32 v9, 0")
    pollflag(a,G,"v7","s73","s64",10,11)
    vm=Cnt(a,"vmcnt",63)
    def ld(k): a(f"buffer_load_dwordx4 v[{24+4*k}:{27+4*k}], {'v2' if k<4 else 'v3'}, s[{CM}:{CM+3}], s63 offen offset:{(k%4)*1024} sc1")
    def mm(k):
        b=24+4*k
        a(f"""v_smfmac_f32_16x16x64_bf16 v[64:67], v[{b}:{b+3}], a[{16*k}:{16*k+7}], v6
        v_max3_u32 v9, v9, v{b}, v{b+1}
        v_smfmac_f32_16x16x64_bf16 v[68:71], v[{b}:{b+3}], a[{16*k+8}:{16*k+15}], v6
        v_max3_u32 v9, v9, v{b+2}, v{b+3}""")
    for k in range(8):
        ld(k); vm.issue(k)
        if k<7: delay(a,pace2)
    for k in range(8):
        vm.wait(k); mm(k)
        if k+1==f2:
            a(f"s_mov_b64 exec, 1\nbuffer_store_dword v13, v12, s[{CM}:{CM+3}], s72 offen sc1\ns_mov_b64 exec, -1"); vm.issue('f')
    a("v_cmp_eq_u32 vcc, -1, v9\ns_cbranch_vccnz L_t2retry")
    a.label("L_t2ok")
    a("s_nop 4")
    for i in range(4): a(f"v_cndmask_b32 v{64+i}, v{64+i}, v{68+i}, s[74:75]")
    a(f"""v_permlane32_swap_b32 v64, v65
    v_permlane32_swap_b32 v66, v67
    v_add_f32 v64, v64, v65
    v_add_f32 v66, v66, v67
    v_permlane16_swap_b32 v64, v66
    v_add_f32 v64, v64, v66
    ds_write_b32 v5, v64
    s_waitcnt lgkmcnt(0)
    s_barrier
    s_cmp_lg_u32 s{W}, 0
    s_cbranch_scc1 L_t2other
    ds_read_b128 v[68:71], v4
    s_waitcnt lgkmcnt(0)
    v_add_f32 v68, v68, v69
    v_add_f32 v70, v70, v71
    v_add_f32 v68, v68, v70
    v_mov_b32_dpp v69, v68 quad_perm:[1,0,3,2] row_mask:0xf bank_mask:0xf
    v_cvt_pk_bf16_f32 v68, v68, v69
    v_min_u32 v68, -2, v68
    s_mov_b64 exec, s[76:77]
    buffer_store_dword v68, v8, s[{CM}:{CM+3}], s65 offen sc1
    s_mov_b64 exec, -1
    s_branch L_t2next
    L_t2other:
    s_cmp_lg_u32 s{W}, 1
    s_cbranch_scc1 L_t2next
    s_add_u32 s65, s60, 5
    s_and_b32 s65, s65, 7
    s_lshl_b32 s65, s65, 18
    s_add_u32 s65, s65, s67
    s_mov_b64 exec, 0xff
    buffer_store_dwordx4 v[16:19], v4, s[{CM}:{CM+3}], s65 offen sc1
    s_mov_b64 exec, -1
    L_t2next:
    s_add_u32 s60, s60, 1
    s_cmp_lt_u32 s60, 63
    s_cbranch_scc1 L_t2loop
    s_endpgm""")
    a.label("L_t2retry")
    a("s_mov_b32 s70, 0")
    a.label("L_t2r1")
    for k in range(8): ld(k)
    a("v_mov_b32 v9, 0\ns_waitcnt vmcnt(0)")
    for k in range(16): a(f"v_max3_u32 v9, v9, v{24+2*k}, v{25+2*k}")
    a(f"""v_cmp_eq_u32 vcc, -1, v9
    s_cbranch_vccz L_t2r2
    s_add_u32 s70, s70, 1
    s_cmp_lt_u32 s70, {G.SPIN}
    s_cbranch_scc1 L_t2r1
    s_endpgm
    L_t2r2:""")
    for i in range(8): a(f"v_mov_b32 v{64+i}, 0")
    for k in range(8): mm(k)
    a("s_nop 3\ns_branch L_t2ok")

def team3(a,cfg,G):
    W=G.sWAVE; WS=G.S_WS; SW=G.S_W; ST=G.S_ST; IDX=G.sIDX
    a.label("L_team3")
    G.arrive(a)
    a(f"""s_and_b32 s60, s{IDX}, 3
    s_lshl_b32 s61, s60, 2
    s_lshr_b32 s62, s{IDX}, 3
    s_add_u32 s61, s61, s62
    s_add_u32 s60, s60, 16
    s_cmp_ge_u32 s{IDX}, 32
    s_cselect_b32 s61, s60, s61
    s_lshr_b32 s62, s{IDX}, 2
    s_and_b32 s62, s62, 1
    s_mov_b32 s{SW}, s20
    s_mov_b32 s{SW+1}, s21
    s_mov_b32 s{SW+2}, {4096*1280}
    s_mov_b32 s{ST}, s24
    s_mov_b32 s{ST+1}, s25
    s_mov_b32 s{ST+2}, {2048*2560}
    v_lshrrev_b32 v22, 4, v1
    v_and_b32 v23, 15, v1
    v_lshrrev_b32 v2, 2, v1
    v_mul_u32_u24 v2, 1280, v2
    v_and_b32 v3, 3, v1
    v_lshl_add_u32 v2, v3, 4, v2
    s_mul_i32 s65, s{W}, {1024*1280}
    s_lshl_b32 s66, s61, 6
    s_add_u32 s65, s65, s66
    s_lshl_b32 s66, s{W}, 15
    v_lshrrev_b32 v24, 2, v23
    v_lshl_add_u32 v24, v22, 2, v24
    v_lshlrev_b32 v24, 6, v24
    v_lshl_add_u32 v24, v3, 4, v24
    v_add_u32 v24, s66, v24
    v_lshlrev_b32 v4, 4, v1              ; lane*16
    v_lshlrev_b32 v7, 7, v1
    v_mul_u32_u24 v5, 2560, v23
    v_lshl_add_u32 v5, v22, 4, v5
    s_lshl_b32 s67, s{W}, 11
    v_add_u32 v6, s67, v4
    """)
    G.wait_all_arrived(a,tmpv=20)
    for rnd in range(2):
        for i in range(32):
            a(f"""s_add_u32 m0, s66, {i*1024}
            s_nop 0
            buffer_load_dwordx4 v2, s[{SW}:{SW+3}], s65 offen lds
            s_add_u32 s65, s65, {16*1280}""")
        a("s_waitcnt vmcnt(0)")
        for hl in range(4):
            for ks in range(4):
                for t in range(2):
                    for hh in range(2):
                        r=(((rnd*4+hl)*4+ks)*2+t)*4+2*hh
                        a(f"ds_read_b64_tr_b16 a[{r}:{r+1}], v24 offset:{(hl*128+32*ks+16*hh)*64+8*t}")
                a("s_waitcnt lgkmcnt(0)")
    a(f"""s_barrier
    s_lshl_b32 s68, s{W}, 10
    s_add_u32 s68, s68, {G.FL_OX}
    s_lshl_b32 s69, s{W}, 16
    s_lshl_b32 s70, s62, 12
    s_add_u32 s69, s69, s70
    s_add_u32 s69, s69, {G.OFF_OX}
    s_mul_i32 s72, s62, {16*2560}
    s_lshl_b32 s70, s61, 6
    s_add_u32 s72, s72, s70
    s_add_u32 s72, s72, 1280
    s_mov_b32 s60, 1""")
    a.label("L_t3loop")
    G.spin_ge(a,"v7",WS,"s68","s60",8,16,sleep=1,x4=True)
    for hl in range(8):
        if hl: a("s_add_u32 s73, s73, 8192")
        else:  a("s_mov_b32 s73, s69")
        for ks in range(4):
            b=32+(hl*4+ks)*4
            a(f"buffer_load_dwordx4 v[{b}:{b+3}], v4, s[{WS}:{WS+3}], s73 offen offset:{ks*1024} sc1")
    for n in range(32):
        a(f"s_waitcnt vmcnt({31-n})")
        for t in range(2):
            c="0" if n==0 else f"v[{8+4*t}:{11+4*t}]"
            a(f"v_mfma_f32_16x16x32_bf16 v[{8+4*t}:{11+4*t}], a[{(n*2+t)*4}:{(n*2+t)*4+3}], v[{32+4*n}:{35+4*n}], {c}")
    a(f"""ds_write_b128 v6, v[8:11]
    ds_write_b128 v6, v[12:15] offset:1024
    s_waitcnt lgkmcnt(0)
    s_barrier
    s_cmp_lg_u32 s{W}, 0
    s_cbranch_scc1 L_t3n""")
    for q in range(6): a(f"ds_read_b128 v[{32+4*q}:{35+4*q}], v4 offset:{2048+q*1024}")
    a("s_waitcnt lgkmcnt(0)")
    for q in range(3):
        for i in range(0,8,2): a(f"v_pk_add_f32 v[{8+i}:{9+i}], v[{8+i}:{9+i}], v[{32+8*q+i}:{33+8*q+i}]")
    for i in range(4): a(f"v_cvt_pk_bf16_f32 v{16+i}, v{8+2*i}, v{9+2*i}")
    a(f"buffer_store_dwordx4 v[16:19], v5, s[{ST}:{ST+3}], s72 offen")
    a(f"""L_t3n:
    s_barrier
    s_add_u32 s69, s69, {32*8192}
    s_add_u32 s72, s72, {32*2560}
    s_add_u32 s60, s60, 1
    s_cmp_le_u32 s60, 64
    s_cbranch_scc1 L_t3loop
    s_endpgm""")

def spare(a,cfg,G):
    W=G.sWAVE; CM=G.S_CM; DB=G.S_DB
    a.label("L_spare")
    G.arrive(a)
    a(f"""s_cmp_lg_u32 s31, 124
    s_cbranch_scc1 L_exit
    v_mov_b32 v2, 0
    ds_write_b32 v2, v2
    s_waitcnt lgkmcnt(0)
    s_barrier
    s_cmp_ge_u32 s{W}, 2
    s_cbranch_scc1 L_exit
    s_lshl_b32 s60, s{W}, 13
    s_add_u32 s60, s60, {12*16384}
    s_mov_b32 s61, 0
    s_mov_b64 exec, 1
    L_probe:
    buffer_store_dword v2, v2, s[{CM}:{CM+3}], s60 offen sc1
    s_waitcnt vmcnt(0)
    s_add_u32 s60, s60, 384
    s_add_u32 s61, s61, 1
    s_cmp_lt_u32 s61, {cfg.get('nprobe',20)}
    s_cbranch_scc1 L_probe
    v_mov_b32 v3, 1
    ds_add_rtn_u32 v4, v2, v3
    s_waitcnt lgkmcnt(0)
    v_readfirstlane_b32 s61, v4
    s_cmp_lg_u32 s61, 0
    s_cbranch_scc1 L_exit
    s_lshl_b32 s60, s{W}, 1
    s_add_u32 s60, s60, 1
    """)
    if 'forcepar' in cfg: a(f"s_mov_b32 s60, {1+2*cfg['forcepar']}")
    a(f"""v_mov_b32 v3, s60
    v_mov_b32 v4, 128
    buffer_store_dword v3, v4, s[{DB}:{DB+3}], 0 offen sc1
    s_endpgm""")

def emit(a,cfg,G):
    import team1
    team1.emit(a,cfg,G)
    team2(a,cfg,G)
    team3(a,cfg,G)
    spare(a,cfg,G)
```

```python
import math
from roles_b import Cnt, delay, get_parity, pollflag, f2u, OOB
L_KX=131072; L_QX=139264; L_EX=155648
LSET=[(0,0),(1,1),(0,2),(1,3),(0,5),(1,6),(0,7),(1,8)]
def frag_map():
    loc={}; n=0; lds=[]
    for (m,c) in LSET:
        for t in range(2): loc[(m,c,t)]=('L',len(lds)); lds.append((m,c,t))
    for m in range(3):
        for c in range(10):
            for t in range(2):
                if (m,c,t) in loc: continue
                loc[(m,c,t)]=('a',8*n) if n<32 else ('v',160+8*(n-32)); n+=1
    assert n==44
    return loc,lds
LOC,LDSF=frag_map()
SC=128**-0.5*math.log2(math.e)

def emit(a,cfg,G):
    W=G.sWAVE; CM=G.S_CM; WS=G.S_WS; SW=G.S_W
    pre1=cfg.get('pre1',7); pace1=cfg.get('pace1',48); f1=cfg.get('f1',2)
    cm=f"s[{CM}:{CM+3}]"; ws=f"s[{WS}:{WS+3}]"
    a.label("L_team1")
    a(f"""v_lshrrev_b32 v22, 4, v1             ; g
    v_and_b32 v23, 15, v1                ; c
    ; o voffset: (r>>2)*64K + (h>>3)*16K + (h&7)*1K + w*256 + (g*4+(r&3))*16
    v_bfe_u32 v5, v1, 2, 1
    v_lshlrev_b32 v5, 16, v5
    v_lshl_add_u32 v5, v22, 6, v5
    v_and_b32 v24, 3, v1
    v_lshl_add_u32 v5, v24, 4, v5
    s_lshr_b32 s60, s31, 3
    s_lshl_b32 s60, s60, 14
    s_and_b32 s61, s31, 7
    s_lshl_b32 s61, s61, 10
    s_add_u32 s60, s60, s61
    s_lshl_b32 s61, s{W}, 8
    s_add_u32 s60, s60, s61
    v_add_u32 v5, s60, v5
    v_bfe_u32 v24, v1, 3, 1
    v_lshl_add_u32 v24, v24, 13, v5
    v_mov_b32 v16, -1
    v_mov_b32 v17, -1
    v_mov_b32 v18, -1
    v_mov_b32 v19, -1""")
    for s in range(8): a(f"s_mov_b32 s61, {s<<18}\nbuffer_store_dwordx4 v[16:19], v24, {cm}, s61 offen sc1")
    a(f"""v_lshlrev_b32 v13, 7, v1             ; lane*128
    v_mov_b32 v12, 0
    s_lshl_b32 s72, s31, 7
    s_add_u32 s73, s72, {G.FL_OX}
    s_lshl_b32 s61, s{W}, 2
    s_add_u32 s73, s73, s61
    s_add_u32 s72, s72, {10*16384}
    s_cmp_lt_u32 s31, 4
    s_cselect_b32 s72, s72, {OOB}
    s_and_b32 s61, s{W}, 1
    s_lshl_b32 s61, s61, 13
    s_add_u32 s61, s61, s72
    s_mov_b64 exec, 1
    buffer_store_dword v12, v13, {cm}, s61 offen sc1
    buffer_store_dword v12, v13, {ws}, s73 offen sc1
    s_mov_b64 exec, -1
    s_cmp_eq_u32 s{W}, 0
    s_cselect_b32 s72, s72, {OOB}
    """)
    G.arrive(a)
    for i in range(4):
        a(f"""v_and_b32 v24, 1, v22
        v_or_b32 v24, {2*i}, v24
        v_lshlrev_b32 v24, 1, v24
        v_xor_b32 v24, v24, v23
        v_lshlrev_b32 v24, 4, v24
        v_lshl_add_u32 v{6+i}, v22, 13, v24""")
    a(f"""v_lshrrev_b32 v24, 2, v23            ; r'
    v_lshrrev_b32 v25, 1, v22
    v_lshlrev_b32 v25, 4, v25
    v_and_b32 v26, 1, v22
    v_lshl_add_u32 v25, v26, 2, v25
    v_and_b32 v27, 1, v24
    v_add_u32 v25, v25, v27
    v_lshrrev_b32 v28, 1, v24
    v_lshl_add_u32 v25, v28, 3, v25
    v_lshlrev_b32 v25, 8, v25
    v_lshl_add_u32 v27, v26, 1, v27
    v_lshl_add_u32 v27, v28, 2, v27
    v_lshlrev_b32 v27, 1, v27            ; f
    v_and_b32 v26, 3, v1
    v_lshlrev_b32 v26, 3, v26
    s_lshl_b32 s61, s{W}, 6
    v_add_u32 v26, s61, v26""")
    for t in range(2):
        if t: a("v_add_u32 v26, 32, v26")
        a(f"""v_lshrrev_b32 v28, 4, v26
        v_xor_b32 v28, v28, v27
        v_lshl_add_u32 v28, v28, 4, v25
        v_and_b32 v29, 8, v26
        v_add_u32 v{2+t}, v28, v29""")
    a(f"""s_lshl_b32 s74, s{W}, 13
    s_lshl_b32 s75, s{W}, 18
    s_lshl_b32 s61, s31, 8
    s_add_u32 s75, s75, s61""")
    groups=[(m,u) for m in range(3) for u in range(5)]
    def gissue(n):
        m,u=groups[n]
        if u==0: a(f"s_mov_b32 s{SW}, s{14+2*m}\ns_mov_b32 s{SW+1}, s{15+2*m}")
        for i in range(8):
            a(f"""s_add_u32 s76, s75, {(128*u+4*i)*8192}
            s_add_u32 m0, s74, {(n%5)*32768+i*1024}
            buffer_load_dwordx4 v{6+(i&3)}, s[{SW}:{SW+3}], s76 offen lds""")
    for n in range(4): gissue(n)
    for n in range(15):
        m,u=groups[n]
        younger=min(3,14-n)
        a(f"s_waitcnt vmcnt({8*younger})\ns_barrier")
        if n+4<15: gissue(n+4)
        slot=n%5
        a(f"v_add_u32 v10, {slot*32768}, v2\nv_add_u32 v11, {slot*32768}, v3")
        for cl in range(2):
            for t in range(2):
                k,r=LOC[(m,2*u+cl,t)]
                if k=='L': k,r='v',32+8*r
                for hb in range(2):
                    for sec in range(2):
                        rr=r+4*hb+2*sec
                        a(f"ds_read_b64_tr_b16 {k}[{rr}:{rr+1}], v{10+t} offset:{(64*cl+32*hb+2*sec)*256}")
        a("s_waitcnt lgkmcnt(0)")
    a(f"""s_barrier
    v_lshlrev_b32 v11, 4, v1             ; lane*16
    s_lshl_b32 s61, s{W}, 15
    v_add_u32 v7, s61, v11""")
    for n in range(16):
        a(f"ds_write_b128 v7, v[{32+8*n}:{35+8*n}] offset:{n*2048}\nds_write_b128 v7, v[{36+8*n}:{39+8*n}] offset:{n*2048+1024}")
    a(f"""; mem load voffset: line = 2gA+(r>>2), piece = 4ph+(r&3)
    v_lshlrev_b32 v2, 8, v22
    v_bfe_u32 v24, v1, 2, 1
    v_lshl_add_u32 v2, v24, 7, v2
    v_bfe_u32 v24, v1, 3, 1
    v_lshl_add_u32 v2, v24, 6, v2
    v_and_b32 v25, 3, v1
    v_lshl_add_u32 v2, v25, 4, v2
    v_add_u32 v3, 4096, v2
    v_add_u32 v4, 16384, v2
    v_cmp_eq_u32 vcc, 0, v24
    v_mov_b32 v26, 0xeeee
    v_mov_b32 v27, 0x4444
    v_cndmask_b32 v6, v26, v27, vcc
    v_lshrrev_b32 v24, 2, v23
    v_xor_b32 v26, v22, v24
    v_lshlrev_b32 v26, 3, v26
    v_lshl_add_u32 v26, v23, 5, v26
    s_lshl_b32 s61, s{W}, 10
    s_add_u32 s61, s61, {L_EX}
    v_add_u32 v8, s61, v26
    v_lshl_add_u32 v26, v22, 2, v24
    v_lshlrev_b32 v26, 5, v26
    v_add_u32 v26, {L_EX}, v26
    v_xor_b32 v27, v25, v22
    v_lshl_add_u32 v9, v27, 3, v26
    v_or_b32 v27, 2, v25
    v_xor_b32 v27, v27, v22
    v_lshl_add_u32 v10, v27, 3, v26
    v_lshlrev_b32 v14, 12, v1
    s_lshl_b32 s77, s31, 7
    s_add_u32 s77, s77, {G.FL_PW}
    s_mul_i32 s78, s31, 24576
    s_add_u32 s78, s78, {G.OFF_QKV}
    s_lshl_b32 s61, s{W}, 11
    s_add_u32 s78, s78, s61
    s_add_u32 s79, s61, {L_KX}
    s_add_u32 s80, s61, {L_QX}
    s_lshl_b32 s81, s31, 13
    s_lshl_b32 s61, s{W}, 10
    s_add_u32 s81, s81, s61
    s_add_u32 s81, s81, {G.OFF_OX}
    s_mov_b32 s82, {hex(f2u(SC))}
    s_mov_b32 s84, 0x00ff00ff
    s_mov_b32 s85, 0x00ff00ff
    s_mov_b32 s83, {OOB}
    """)
    G.wait_all_arrived(a,tmpv=20)
    get_parity(a,G,20)
    a(f"""s_add_u32 s72, s72, s62
    s_add_u32 s86, s62, {11*16384}
    s_mov_b32 s60, 0
    s_mov_b32 s87, {L_QX}""")
    G.spin_ge(a,"v14",WS,"s77","1",3,20,sleep=1)
    a("s_waitcnt lgkmcnt(0)\ns_barrier")
    def prefetch():
        a(f"""s_mov_b32 m0, s80
        s_add_u32 s61, s78, 8192
        buffer_load_dwordx4 v11, {ws}, s78 offen sc1 lds
        buffer_load_dwordx4 v11, {ws}, s78 offen offset:1024 sc1 lds
        s_mov_b32 m0, s79
        s_add_u32 s63, s78, 16384
        buffer_load_dwordx4 v11, {ws}, s61 offen sc1 lds
        buffer_load_dwordx4 v11, {ws}, s61 offen offset:1024 sc1 lds
        buffer_load_dwordx4 v[152:155], v11, {ws}, s63 offen sc1
        buffer_load_dwordx4 v[156:159], v11, {ws}, s63 offen offset:1024 sc1
        s_add_u32 s78, s78, {32*24576}
        s_xor_b32 s80, s80, {L_QX^(L_QX+8192)}""")
    def lread(n):
        b=80+8*(n%4)
        a(f"ds_read_b128 v[{b}:{b+3}], v7 offset:{n*2048}\nds_read_b128 v[{b+4}:{b+7}], v7 offset:{n*2048+1024}")
    def rearm():
        for n in range(4): lread(n)
        for i in range(16): a(f"v_mov_b32 v{56+i}, 0")
        a("v_mov_b32 v12, 0")
    prefetch()
    rearm()
    a.label("L_t1loop")
    a(f"""s_and_b32 s63, s60, 7
    s_lshl_b32 s63, s63, 18
    s_add_u32 s64, s63, s62              ; o slot
    s_add_u32 s65, s64, {8*16384}
    s_add_u32 s66, s60, 1""")
    pollflag(a,G,"v13","s86","s66",15,48)
    vm=Cnt(a,"vmcnt",63); lg=Cnt(a,"lgkmcnt",15)
    for n in range(4): lg.issue(('L',n)); lg.issue(('L',n))
    def ld(k):
        vo="v2" if k<4 else ("v3" if k<8 else "v4")
        a(f"buffer_load_dwordx4 v[{16+4*k}:{19+4*k}], {vo}, {cm}, s65 offen offset:{(k%4)*1024} sc1")
    fill=[f"ds_read_b128 v[{112+4*i}:{115+4*i}], v11 offset:{i*1024}" for i in range(8)]
    a(f"v_add_u32 v11, {L_KX}, v11")
    for k in range(pre1):
        ld(k); vm.issue(k)
        if k<pre1-1:
            used=0
            for _ in range(2):
                if fill: a(fill.pop(0)); lg.issue('kx'); used+=4
            if k<4:
                a(f"v_mov_b32 v{144+2*k}, v{152+2*k}\nv_mov_b32 v{145+2*k}, v{153+2*k}"); used+=8
            delay(a,pace1-used)
    assert not fill
    a(f"v_subrev_u32 v11, {L_KX}, v11")
    def qk(k, first, hook=None):
        A=f"v[{16+4*k}:{19+4*k}]"
        order=[(m,t) for m in range(2) for t in range(2)]
        order.sort(key=lambda x: 0 if LOC[(x[0],k,x[1])][0]=='L' else 1)
        for i,(m,t) in enumerate(order):
            kind,r=LOC[(m,k,t)]
            d=56+8*m+4*t
            if kind=='L':
                lg.wait(('L',r)); b=80+8*(r%4); B=f"v[{b}:{b+7}]"
            else: B=f"{kind}[{r}:{r+7}]"
            a(f"v_smfmac_f32_16x16x64_bf16 v[{d}:{d+3}], {A}, {B}, v6")
            if kind=='L' and r+4<16:
                lread(r+4); lg.issue(('L',r+4)); lg.issue(('L',r+4))
            if first and i>=2: a(f"v_max3_u32 v12, v12, v{16+4*k+2*(i-2)}, v{17+4*k+2*(i-2)}")
            if hook and i==2: hook()
    issued=pre1
    for k in range(10):
        vm.wait(k)
        def hook():
            nonlocal issued
            if issued<10: ld(issued); vm.issue(issued); issued+=1
            elif k==4:
                a(f"buffer_store_dwordx4 v[72:75], v11, {ws}, s83 offen sc1"); vm.issue('ox')
            elif k==5:
                a(f"s_add_u32 s61, s83, 4096\nbuffer_store_dwordx4 v[76:79], v11, {ws}, s61 offen sc1"); vm.issue('ox')
            elif k==6:
                for i in range(4): a(f"v_mov_b32 v{72+i}, 0")
            elif k==7:
                for i in range(4): a(f"v_mov_b32 v{76+i}, 0")
            elif k==8: a("v_mov_b32 v15, s66")
        qk(k,True,hook)
    a("v_cmp_eq_u32 vcc, -1, v12\ns_cbranch_vccnz L_t1retry")
    a.label("L_t1ok")
    vq=[(c,t) for c in range(10) for t in range(2)]
    def vs(n=1):
        for _ in range(n):
            if vq:
                c,t=vq.pop(0); kind,r=LOC[(2,c,t)]
                a(f"v_smfmac_f32_16x16x64_bf16 v[{72+4*t}:{75+4*t}], v[{16+4*c}:{19+4*c}], {kind}[{r}:{r+7}], v6")
    def F1():
        a(f"s_mov_b64 exec, 1\nbuffer_store_dword v15, v13, {cm}, s72 offen sc1\ns_mov_b64 exec, -1"); vm.issue('f1')
    vs(2); a("s_nop 3")
    for t in range(2):
        for i in range(4):
            a(f"v_permlane32_swap_b32 v{56+4*t+i}, v{64+4*t+i}")
            if i&1: vs()
        a(f"""v_pk_add_f32 v[{56+4*t}:{57+4*t}], v[{56+4*t}:{57+4*t}], v[{64+4*t}:{65+4*t}]
        v_pk_add_f32 v[{58+4*t}:{59+4*t}], v[{58+4*t}:{59+4*t}], v[{66+4*t}:{67+4*t}]
        v_cvt_pk_bf16_f32 v{96+2*t}, v{56+4*t}, v{57+4*t}
        v_cvt_pk_bf16_f32 v{97+2*t}, v{58+4*t}, v{59+4*t}
        ds_write_b64 v8, v[{96+2*t}:{97+2*t}] offset:{512*t}""")
    vs(2)
    a("s_waitcnt lgkmcnt(0)\ns_barrier")
    lg.q=[]
    for ks in range(4):
        for hh in range(2):
            a(f"ds_read_b64_tr_b16 v[{80+4*ks+2*hh}:{81+4*ks+2*hh}], v9 offset:{(32*ks+16*hh)*32}"); lg.issue(ks)
    if f1==0: F1()
    vs(3)
    for ks in range(4):
        lg.wait(ks)
        X=f"v[{80+4*ks}:{83+4*ks}]"
        for j,(d,A) in enumerate(((56,f"v[{112+4*ks}:{115+4*ks}]"),(60,f"v[{128+4*ks}:{131+4*ks}]"),(64,X))):
            a(f"v_mfma_f32_16x16x32_bf16 v[{d}:{d+3}], {A}, {X}, {'0' if ks==0 else f'v[{d}:{d+3}]'}")
    if f1==1: F1()
    vs(2); a("s_nop 2")
    D="row_ror:8 row_mask:0xf"
    for i in range(4): a(f"v_mov_b32_dpp v{56+i}, v{60+i} {D} bank_mask:0xc")
    vs()
    a(f"""v_mov_b32_dpp v64, v66 {D} bank_mask:0xc
    v_mov_b32_dpp v65, v67 {D} bank_mask:0xc
    v_max3_f32 v62, v56, v57, v58
    v_mov_b32 v60, v64
    v_mov_b32 v61, v65""")
    vs()
    a(f"""v_max_f32 v62, v62, v59
    v_permlane32_swap_b32 v60, v64
    v_permlane32_swap_b32 v61, v65""")
    vs()
    a(f"""v_max3_f32 v62, v62, v64, v65""")
    if f1==2: F1()
    a(f"""v_max_f32_dpp v62, v62, v62 {D} bank_mask:0xf
    v_mov_b32 v63, v62""")
    vs()
    a(f"""v_permlane16_swap_b32 v62, v63
    v_max_f32 v62, v62, v63
    v_mov_b32 v63, v62""")
    vs()
    a(f"""v_permlane32_swap_b32 v62, v63
    v_max_f32 v62, v62, v63
    v_mul_f32 v62, s82, v62""")
    P=[56,57,58,59,64,65]
    for r in P: a(f"v_fma_f32 v{r}, v{r}, s82, -v62")
    vs()
    for i,r in enumerate(P):
        a(f"v_exp_f32 v{r}, v{r}")
        if i&1: vs()
    vs(20)
    if f1==3: F1()
    a(f"""v_cvt_pk_bf16_f32 v96, v56, v57
    v_cvt_pk_bf16_f32 v97, v58, v59
    v_cvt_pk_bf16_f32 v100, v64, v65
    v_add_f32 v60, v64, v65
    v_mov_b32_dpp v98, v96 {D} bank_mask:0xf
    v_mov_b32_dpp v99, v97 {D} bank_mask:0xf
    v_mov_b32_dpp v101, v100 {D} bank_mask:0xf
    v_add_f32 v56, v56, v57
    v_add_f32 v58, v58, v59
    v_mfma_f32_16x16x32_bf16 v[104:107], v[144:147], v[96:99], 0
    v_mfma_f32_16x16x32_bf16 v[108:111], v[148:151], v[96:99], 0
    v_cvt_pk_bf16_f32 v68, v72, v73
    v_cvt_pk_bf16_f32 v69, v74, v75
    v_cvt_pk_bf16_f32 v70, v76, v77
    v_cvt_pk_bf16_f32 v71, v78, v79
    v_add_f32 v56, v56, v58
    v_fma_f32 v56, v60, 0.5, v56
    v_mfma_f32_16x16x16_bf16 v[104:107], v[68:69], v[100:101], v[104:107]
    v_mfma_f32_16x16x16_bf16 v[108:111], v[70:71], v[100:101], v[108:111]
    v_add_f32_dpp v56, v56, v56 {D} bank_mask:0xf
    v_mov_b32 v57, v56
    v_permlane16_swap_b32 v56, v57
    v_add_f32 v56, v56, v57
    v_mov_b32 v57, v56
    v_permlane32_swap_b32 v56, v57
    v_add_f32 v56, v56, v57
    v_rcp_f32 v56, v56
    v_mov_b32 v57, v56""")
    for i in range(4): a(f"v_pk_mul_f32 v[{104+2*i}:{105+2*i}], v[{104+2*i}:{105+2*i}], v[56:57]")
    for i in range(4): a(f"v_cvt_pk_bf16_f32 v{96+i}, v{104+2*i}, v{105+2*i}")
    for i in range(4): a(f"v_min_u32 v{96+i}, -2, v{96+i}")
    a(f"""s_mov_b64 exec, s[84:85]
    buffer_store_dwordx4 v[96:99], v5, {cm}, s64 offen sc1"""); vm.issue('o')
    for i in range(4): a(f"v_mov_b32 v{104+i}, -1")
    a(f"""s_xor_b32 s64, s64, {4<<18}
    buffer_store_dwordx4 v[104:107], v5, {cm}, s64 offen sc1"""); vm.issue('arm')
    a("v_mov_b32 v48, s60\ns_mov_b64 exec, 1")
    vm.wait('ox')
    a(f"buffer_store_dword v48, v13, {ws}, s73 offen sc1\ns_mov_b64 exec, -1")
    a(f"""s_cmp_ge_u32 s66, 64
    s_cbranch_scc1 L_t1nopf
    s_and_b32 s61, s66, 3
    s_cmp_lg_u32 s61, 0
    s_cbranch_scc1 L_t1pf
    s_lshr_b32 s71, s66, 2
    s_add_u32 s71, s71, 1""")
    G.spin_ge(a,"v14",WS,"s77","s71",3,48,sleep=1)
    a.label("L_t1pf")
    prefetch()
    a.label("L_t1nopf")
    a(f"v_add_u32 v49, s87, v11\ns_xor_b32 s87, s87, {L_QX^(L_QX+8192)}")
    for ks in range(4):
        for hh in range(2):
            a(f"ds_read_b64_tr_b16 v[{80+4*ks+2*hh}:{81+4*ks+2*hh}], v10 offset:{(32*ks+16*hh)*32}")
    for i in range(8): a(f"ds_read_b128 v[{16+4*i}:{19+4*i}], v49 offset:{i*1024}")
    a(f"""v_lshrrev_b32 v50, 4, v1
    v_and_b32 v51, 15, v1
    v_mov_b32 v49, {hex(f2u(-1e30))}""")
    for i in range(4):
        a(f"v_lshl_add_u32 v48, v50, 2, {i}\nv_cmp_le_u32 vcc, v48, v51\nv_cndmask_b32 v{52+i}, v49, 0, vcc")
    a("s_waitcnt lgkmcnt(0)")
    T=[(56,80,16,"0"),(60,112,16,"v[52:55]"),(96,80,32,"0"),(100,112,32,"0"),(104,128,32,"v[52:55]")]
    for ks in range(4):
        for (d,A,B,c) in T:
            a(f"v_mfma_f32_16x16x32_bf16 v[{d}:{d+3}], v[{A+4*ks}:{A+4*ks+3}], v[{B+4*ks}:{B+4*ks+3}], {c if ks==0 else f'v[{d}:{d+3}]'}")
    for rt,(base,n) in enumerate(((56,8),(96,12))):
        R=list(range(base,base+n))
        a(f"v_max3_f32 v48, v{R[0]}, v{R[1]}, v{R[2]}")
        for i in range(3,n-1,2): a(f"v_max3_f32 v48, v48, v{R[i]}, v{R[i+1]}")
        a(f"""v_max_f32 v48, v48, v{R[-1]}
        v_mov_b32 v49, v48
        v_permlane16_swap_b32 v48, v49
        v_max_f32 v48, v48, v49
        v_mov_b32 v49, v48
        v_permlane32_swap_b32 v48, v49
        v_max_f32 v48, v48, v49
        v_mul_f32 v48, s82, v48""")
        for r in R: a(f"v_fma_f32 v{r}, v{r}, s82, -v48")
        for r in R: a(f"v_exp_f32 v{r}, v{r}")
        a(f"v_cvt_pk_bf16_f32 v16, v{R[0]}, v{R[1]}\nv_cvt_pk_bf16_f32 v17, v{R[2]}, v{R[3]}")
        a(f"v_cvt_pk_bf16_f32 v20, v{R[4]}, v{R[5]}\nv_cvt_pk_bf16_f32 v21, v{R[6]}, v{R[7]}")
        if n==8: a("v_mov_b32 v22, 0\nv_mov_b32 v23, 0")
        else: a(f"v_cvt_pk_bf16_f32 v22, v{R[8]}, v{R[9]}\nv_cvt_pk_bf16_f32 v23, v{R[10]}, v{R[11]}")
        a(f"""v_mfma_f32_16x16x32_bf16 v[24:27], v[144:147], v[20:23], 0
        v_mfma_f32_16x16x32_bf16 v[28:31], v[148:151], v[20:23], 0
        v_mfma_f32_16x16x16_bf16 v[24:27], v[68:69], v[16:17], v[24:27]
        v_mfma_f32_16x16x16_bf16 v[28:31], v[70:71], v[16:17], v[28:31]
        v_add_f32 v48, v{R[0]}, v{R[1]}
        v_add_f32 v49, v{R[2]}, v{R[3]}
        v_add_f32 v48, v48, v49
        v_mul_f32 v48, 0.5, v48""")
        for r in R[4:]: a(f"v_add_f32 v48, v48, v{r}")
        a(f"""v_mov_b32 v49, v48
        v_permlane16_swap_b32 v48, v49
        v_add_f32 v48, v48, v49
        v_mov_b32 v49, v48
        v_permlane32_swap_b32 v48, v49
        v_add_f32 v48, v48, v49
        v_rcp_f32 v48, v48
        v_mov_b32 v49, v48""")
        for i in range(4): a(f"v_pk_mul_f32 v[{24+2*i}:{25+2*i}], v[{24+2*i}:{25+2*i}], v[48:49]")
        for i in range(4): a(f"v_cvt_pk_bf16_f32 v{72+4*rt+i}, v{24+2*i}, v{25+2*i}")
    a(f"s_mov_b32 s83, s81\ns_add_u32 s81, s81, {32*8192}")
    rearm()
    a(f"""s_add_u32 s60, s60, 1
    s_cmp_lt_u32 s60, 64
    s_cbranch_scc1 L_t1loop
    s_add_u32 s61, s83, 4096
    buffer_store_dwordx4 v[72:75], v11, {ws}, s83 offen sc1
    buffer_store_dwordx4 v[76:79], v11, {ws}, s61 offen sc1
    v_mov_b32 v48, 64
    s_mov_b64 exec, 1
    s_waitcnt vmcnt(0)
    buffer_store_dword v48, v13, {ws}, s73 offen sc1
    s_endpgm""")
    a.label("L_t1retry")
    a("s_mov_b32 s70, 0")
    a.label("L_t1r1")
    for k in range(10): ld(k)
    a("v_mov_b32 v12, 0\ns_waitcnt vmcnt(0)")
    for k in range(20): a(f"v_max3_u32 v12, v12, v{16+2*k}, v{17+2*k}")
    a(f"""v_cmp_eq_u32 vcc, -1, v12
    s_cbranch_vccz L_t1r2
    s_add_u32 s70, s70, 1
    s_cmp_lt_u32 s70, {G.SPIN}
    s_cbranch_scc1 L_t1r1
    s_endpgm
    L_t1r2:""")
    rearm()
    lg.q=[]
    for n in range(4): lg.issue(('L',n)); lg.issue(('L',n))
    for k in range(10): qk(k,False)
    a("s_nop 7\ns_branch L_t1ok")
```

```python
import sys, json
from asmlib import Asm
import hz

NAME="concat_heads__sliding_block__memory_aug_recurrent_mem_tr__prompt"
MB=1<<20
OFF_QKV=4*MB; OFF_OX=52*MB; OFF_QA=68*MB; OFF_KA=72*MB; OFF_VA=76*MB; OFF_OA=80*MB; OFF_FL=84*MB
FL_PW=OFF_FL; FL_OX=OFF_FL+32768; FL_A2=OFF_FL+65536
WS_BYTES=268435456
SPIN=1<<20
NWG=256
NARR=256
S_WS=32; S_X=36; S_W=40; S_ST=44; S_CM=48; S_DB=52
sWAVE=56; sIDX=57

CFG=dict(roles="all")

def srd(a, d, lo, size):
    a(f"s_mov_b32 s{d}, s{lo}\ns_mov_b32 s{d+1}, s{lo+1}\ns_mov_b32 s{d+2}, {size}\ns_mov_b32 s{d+3}, 0x20000")

def spin_ge(a, voff, srdreg, soff, target, nl, tmpv, cnt="s70", sleep=2, x4=False):
    l1=a.lab("SP"); l2=a.lab("SD")
    a(f"s_mov_b64 exec, {(1<<nl)-1}" if nl<32 else "s_mov_b32 exec_hi, 0" if nl==32 else "")
    a(f"s_mov_b32 {cnt}, 0")
    a.label(l1)
    if x4:
        a(f"buffer_load_dwordx4 v[{tmpv}:{tmpv+3}], {voff}, s[{srdreg}:{srdreg+3}], {soff} offen sc1\ns_waitcnt vmcnt(0)")
        a(f"v_min_u32 v{tmpv}, v{tmpv}, v{tmpv+1}\nv_min3_u32 v{tmpv}, v{tmpv}, v{tmpv+2}, v{tmpv+3}")
    else:
        a(f"buffer_load_dword v{tmpv}, {voff}, s[{srdreg}:{srdreg+3}], {soff} offen sc1\ns_waitcnt vmcnt(0)")
    a(f"""v_cmp_gt_u32 vcc, {target}, v{tmpv}
    s_cbranch_vccz {l2}
    s_sleep {sleep}
    s_add_u32 {cnt}, {cnt}, 1
    s_cmp_lt_u32 {cnt}, {SPIN}
    s_cbranch_scc1 {l1}
    s_endpgm""")
    a.label(l2)
    a("s_mov_b64 exec, -1")

def arrive(a):
    l=a.lab("AR")
    a(f"""s_waitcnt vmcnt(0)
    s_barrier
    s_cmp_lg_u32 s{sWAVE}, 0
    s_cbranch_scc1 {l}
    s_mov_b64 exec, 1
    v_mov_b32 v20, 0
    v_mov_b32 v21, 1
    buffer_atomic_add v21, v20, s[{S_DB}:{S_DB+3}], 0 offen sc1
    s_mov_b64 exec, -1""")
    a.label(l)

def wait_all_arrived(a, tmpv=20):
    a(f"v_mov_b32 v{tmpv+1}, 0\ns_movk_i32 s71, {NARR}")
    spin_ge(a, f"v{tmpv+1}", S_DB, "0", "s71", 1, tmpv, sleep=4)

def pw_setup(a):
    a(f"""
    v_lshrrev_b32 v22, 4, v1            ; l>>4
    v_and_b32 v23, 15, v1               ; l&15
    """)
    for i in range(4):
        a(f"""v_add_u32 v24, {4*i}, v22
        v_xor_b32 v25, v24, v23
        v_mul_u32_u24 v24, 1280, v24
        v_lshl_add_u32 v{2+i}, v25, 4, v24""")
    a("v_mul_lo_u32 v24, v22, s60")
    for v in range(2):
        a(f"""v_add_u32 v25, {4*v}, v22
        v_lshlrev_b32 v25, 1, v25
        v_xor_b32 v25, v25, v23
        v_lshl_add_u32 v{6+v}, v25, 4, v24""")
    a(f"""v_lshrrev_b32 v24, 2, v23           ; r'
    v_and_b32 v25, 3, v1                ; cc
    v_lshl_add_u32 v26, v22, 3, v24     ; 8g+r'
    v_lshlrev_b32 v26, 8, v26
    v_and_b32 v27, 1, v22
    v_lshl_add_u32 v27, v27, 2, v24
    v_lshlrev_b32 v27, 1, v27           ; f_w
    v_mul_lo_u32 v25, v25, s64
    s_mul_i32 s70, s{sWAVE}, s62
    v_add_u32 v25, s70, v25
    """)
    for t in range(2):
        if t==1: a("v_add_u32 v25, s63, v25")
        a(f"""v_lshrrev_b32 v28, 4, v25
        v_xor_b32 v28, v28, v27
        v_lshl_add_u32 v28, v28, 4, v26
        v_and_b32 v29, 8, v25
        v_add_u32 v{8+t}, v28, v29""")
    for ks in range(4):
        a(f"""v_add_u32 v24, {4*ks}, v22
        v_xor_b32 v24, v24, v23
        v_lshlrev_b32 v24, 4, v24
        v_lshl_add_u32 v{30+ks}, v23, 8, v24
        v_add_u32 v{34+ks}, 0x10000, v{30+ks}
        v_add_u32 v{38+ks}, 0x20000, v{30+ks}""")
    a("""v_cmp_eq_u32 vcc, 0, v22
    v_cndmask_b32 v19, 0, -1, vcc
    s_cmp_eq_u32 s59, 0
    s_cselect_b32 s70, -1, 0
    v_or_b32 v19, s70, v19
    v_cmp_eq_u32 vcc, 4, v23
    v_mov_b32 v24, 0x3f803f80
    v_cndmask_b32 v42, 0, v24, vcc
    v_cndmask_b32 v43, -1, 0, vcc
    v_or_b32 v43, s70, v43
    v_not_b32 v24, v43
    v_and_b32 v42, v24, v42""")

def pw_xdma(a, i, st, nextblk):
    base = "s73" if nextblk else "s72"
    a(f"""s_add_u32 s75, {base}, {(16*(i>>2))*1280+st*256}
    s_add_u32 m0, s74, {st*32768+i*1024}
    buffer_load_dwordx4 v{2+(i&3)}, s[{S_X}:{S_X+3}], s75 offen lds""")

def pw_loadw(a):
    a(f"""s_lshl_b32 s74, s{sWAVE}, 13
    s_mul_i32 s70, s{sWAVE}, 32
    s_mul_i32 s76, s70, s60
    s_add_u32 s76, s76, s61
    s_lshl_b32 s77, s60, 2               ; 4 rows
    s_mul_i32 s78, s60, 96
    s_mul_i32 s70, s70, 1280
    s_add_u32 s72, s68, s70
    s_add_u32 s73, s72, {128*1280}""")
    for u in range(5):
        for i in range(8):
            a(f"""s_add_u32 m0, s74, {u*32768+i*1024}
            s_nop 0
            buffer_load_dwordx4 v{6+((i>>1)&1)}, s[{S_W}:{S_W+3}], s76 offen lds
            s_add_u32 s76, s76, s77""")
        a("s_add_u32 s76, s76, s78")

def pw_readw(a, xwait=None):
    nx=0
    for u in range(5):
        a(f"s_waitcnt vmcnt({8*(4-u)+nx})\ns_barrier")
        for ks in range(4):
            for t in range(2):
                for hh in range(2):
                    r=((u*4+ks)*2+t)*4+hh*2
                    a(f"ds_read_b64_tr_b16 a[{r}:{r+1}], v{8+t} offset:{(32*ks+4*hh)*256}")
        a("v_add_u32 v8, 0x8000, v8\nv_add_u32 v9, 0x8000, v9")
        a("s_waitcnt lgkmcnt(0)\ns_barrier")
        if xwait is None and u<4:
            for i in range(8): pw_xdma(a,i,u,False)
            nx+=8
    if xwait is not None:
        xwait()
        for u in range(4):
            for i in range(8): pw_xdma(a,i,u,False)

def pw_frag(a, st, ks, rt, dst):
    a(f"ds_read_b128 v[{dst}:{dst+3}], v{30+4*(st>>1)+ks} offset:{(st&1)*32768+rt*4096}")

def pw_main(a, form, done):
    L=a.lab("PWL")
    a("s_waitcnt vmcnt(24)\ns_barrier")
    for rt in range(8): pw_frag(a,0,0,rt,128+4*rt)
    a("s_mov_b32 s79, 0")
    a.label(L)
    for st in range(5):
        for ks in range(4):
            k=st*4+ks
            cur=128+32*(k&1); nxt=128+32*((k+1)&1)
            if ks==3:
                a("s_waitcnt vmcnt(16)\ns_barrier")
                if st==2:
                    a(f"""s_mov_b64 exec, 1
                    v_mov_b32 v20, s79
                    buffer_store_dword v20, v21, s[{S_WS}:{S_WS+3}], 0 offen sc1
                    s_mov_b64 exec, -1""")
            n = st if ks==3 else st-1
            q = (ks+1)&3
            for rt in range(8):
                a("s_waitcnt lgkmcnt(7)")
                for t in range(2):
                    d=64+(rt*2+t)*4; w=(k*2+t)*4
                    c = "0" if k==0 else f"v[{d}:{d+3}]"
                    if form=='T': a(f"v_mfma_f32_16x16x32_bf16 v[{d}:{d+3}], a[{w}:{w+3}], v[{cur+4*rt}:{cur+4*rt+3}], {c}")
                    else:         a(f"v_mfma_f32_16x16x32_bf16 v[{d}:{d+3}], v[{cur+4*rt}:{cur+4*rt+3}], a[{w}:{w+3}], {c}")
                nst=(st+1)%5 if ks==3 else st
                pw_frag(a,nst,(ks+1)&3,rt,nxt+4*rt)
                if rt in (2,6):
                    i=2*q+(rt==6)
                    tgt=(n+4)%5
                    nb = (n>=1) if ks==3 else (n>=1)
                    if n==-1: tgt=3; nb=False
                    pw_xdma(a,i,tgt,nb)
    for idx in range(8):
        hi,lo=idx>>1,idx&1
        if form=='T': srcs=[64+(idx*2)*4, 64+(idx*2+1)*4]
        else:         srcs=[64+((2*hi)*2+lo)*4, 64+((2*hi+1)*2+lo)*4]
        o=192+4*(idx&3)
        a(f"""v_cvt_pk_bf16_f32 v{o}, v{srcs[0]}, v{srcs[0]+1}
        v_cvt_pk_bf16_f32 v{o+1}, v{srcs[0]+2}, v{srcs[0]+3}
        v_cvt_pk_bf16_f32 v{o+2}, v{srcs[1]}, v{srcs[1]+1}
        v_cvt_pk_bf16_f32 v{o+3}, v{srcs[1]+2}, v{srcs[1]+3}""")
        if form=='T': a(f"v_and_b32 v{o+2}, v19, v{o+2}\nv_and_b32 v{o+3}, v19, v{o+3}")
        if form=='N' and lo==1:
            for i in range(4): a(f"v_and_or_b32 v{o+i}, v{o+i}, v43, v42")
        if lo==0: a("s_mov_b32 s75, s65")
        else:     a("s_add_u32 s75, s65, s67\ns_add_u32 s65, s65, s66")
        a(f"buffer_store_dwordx4 v[{o}:{o+3}], v18, s[{S_ST}:{S_ST+3}], s75 offen sc1")
    a(f"""s_mov_b32 s72, s73
    s_add_u32 s73, s73, {128*1280}
    s_add_u32 s79, s79, 1
    s_cmp_lt_u32 s79, s69
    s_cbranch_scc1 {L}
    s_waitcnt vmcnt(0) lgkmcnt(0)
    s_barrier
    s_mov_b64 exec, 1
    v_mov_b32 v20, s79
    buffer_store_dword v20, v21, s[{S_WS}:{S_WS+3}], 0 offen sc1
    s_mov_b64 exec, -1
    s_branch {done}""")

def build(cfg):
    global NARR
    NARR=cfg.get('narr',256)
    a=Asm()
    a(f"""
    s_cmp_ge_u32 s2, {NWG}
    s_cbranch_scc1 L_exit
    s_load_dwordx16 s[4:19], s[0:1], 0
    s_load_dwordx8 s[20:27], s[0:1], 64
    s_load_dwordx2 s[28:29], s[0:1], 96
    v_and_b32 v1, 63, v0
    v_lshrrev_b32 v2, 6, v0
    v_readfirstlane_b32 s{sWAVE}, v2
    s_and_b32 s30, s2, 7
    s_lshr_b32 s31, s2, 3
    s_lshl_b32 s31, s31, 2
    s_and_b32 s70, s30, 3
    s_add_u32 s31, s31, s70
    s_waitcnt lgkmcnt(0)
    """)
    srd(a,S_WS,28,WS_BYTES); srd(a,S_DB,26,256)
    srd(a,S_X,10,2048*1280); srd(a,S_W,14,640*8192); srd(a,S_ST,28,WS_BYTES)
    a(f"""s_add_u32 s{S_CM}, s28, {2*MB-1}
    s_addc_u32 s{S_CM+1}, s29, 0
    s_and_b32 s{S_CM}, s{S_CM}, {hex((~(2*MB-1))&0xffffffff)}
    s_mov_b32 s{S_CM+2}, {2*MB}
    s_mov_b32 s{S_CM+3}, 0x20000
    s_cmp_ge_u32 s30, 4
    s_cbranch_scc1 L_half1
    s_cmp_lt_u32 s31, 32
    s_cbranch_scc1 L_team1
    s_cmp_lt_u32 s31, 112
    s_cbranch_scc1 L_team2
    s_cmp_ge_u32 s31, 120
    s_cbranch_scc1 L_spare
    s_sub_u32 s{sIDX}, s31, 80           ; 32..39
    s_branch L_team3
    L_half1:
    s_mov_b32 s{sIDX}, s31
    s_cmp_lt_u32 s31, 96
    s_cbranch_scc1 L_pw
    s_sub_u32 s{sIDX}, s31, 96           ; 0..31
    s_branch L_team3
    """)
    a.label("L_pw")
    a(f"""s_lshl_b32 s58, s{sIDX}, 7
    s_add_u32 s58, s58, {FL_PW}
    v_mov_b32 v21, s58
    v_mov_b32 v20, 0
    s_mov_b64 exec, 1
    buffer_store_dword v20, v21, s[{S_WS}:{S_WS+3}], 0 offen sc1
    v_add_u32 v22, {96*128}, v21
    buffer_store_dword v20, v22, s[{S_WS}:{S_WS+3}], 0 offen sc1
    s_cmp_ge_u32 s{sIDX}, 16
    s_cbranch_scc1 L_pw_noz
    v_add_u32 v22, {FL_A2-FL_PW}, v21
    buffer_store_dword v20, v22, s[{S_WS}:{S_WS+3}], 0 offen sc1
    L_pw_noz:
    s_mov_b64 exec, -1
    s_cmp_eq_u32 s{sWAVE}, 0
    s_cselect_b32 s58, s58, 0x7ff00000
    v_mov_b32 v21, s58
    v_lshlrev_b32 v18, 4, v1
    s_mov_b32 s68, 0
    s_mov_b32 s69, 16
    s_mov_b32 s84, 0
    ; B type: m = idx/32 (0:k 1:v 2:q), h = idx%32
    s_lshr_b32 s80, s{sIDX}, 5
    s_and_b32 s81, s{sIDX}, 31
    s_cmp_eq_u32 s80, 0
    s_cselect_b32 s{S_W}, s16, s14
    s_cselect_b32 s{S_W+1}, s17, s15
    s_cselect_b32 s82, 8192, 0
    s_cmp_eq_u32 s80, 1
    s_cselect_b32 s{S_W}, s18, s{S_W}
    s_cselect_b32 s{S_W+1}, s19, s{S_W+1}
    s_cselect_b32 s82, 16384, s82
    s_cselect_b32 s83, 11, 10
    s_movk_i32 s67, 4096
    s_cselect_b32 s67, 1024, s67
    s_mov_b32 s60, 8192
    s_lshl_b32 s61, s81, 8
    s_mov_b32 s62, 64
    s_mov_b32 s63, 32
    s_mov_b32 s64, 8
    s_mul_i32 s65, s81, 24576
    s_add_u32 s65, s65, s82
    s_lshl_b32 s70, s{sWAVE}, s83
    s_add_u32 s65, s65, s70
    s_add_u32 s65, s65, {OFF_QKV}
    s_mov_b32 s66, {32*24576}
    s_mov_b32 s59, 0
    s_branch L_pwgo
    L_pwA:
    ; second pass: part A projection, unit = idx % 24, quarter of the rows = idx / 24
    s_mov_b32 s84, 2
    v_add_u32 v21, {96*128}, v21
    s_mul_i32 s83, s{sIDX}, 2731
    s_lshr_b32 s83, s83, 16
    s_mul_i32 s81, s83, 24
    s_sub_u32 s81, s{sIDX}, s81
    s_mul_i32 s68, s83, {512*1280}
    s_mov_b32 s69, 4
    s_lshr_b32 s82, s81, 3               ; m: 0 q 1 k 2 v
    s_and_b32 s81, s81, 7
    s_mov_b32 s{S_X}, s4
    s_mov_b32 s{S_X+1}, s5
    s_mov_b32 s{S_W}, s6
    s_mov_b32 s{S_W+1}, s7
    s_mov_b32 s{S_W+2}, {640*3840}
    s_mov_b32 s60, 3840
    s_mul_i32 s61, s82, 1280
    s_mul_i32 s70, s81, 160
    s_add_u32 s61, s61, s70
    s_mov_b32 s62, 40
    s_mov_b32 s63, 32
    s_mov_b32 s64, 8
    s_lshl_b32 s65, s81, 2
    s_add_u32 s65, s65, s{sWAVE}
    s_lshl_b32 s65, s65, 17
    s_lshl_b32 s70, s82, 22
    s_add_u32 s65, s65, s70
    s_add_u32 s65, s65, {OFF_QA}
    s_lshl_b32 s70, s83, 15
    s_add_u32 s65, s65, s70
    s_mov_b32 s66, 2048
    s_mov_b32 s67, 1024
    s_mov_b32 s59, 1
    s_cmp_eq_u32 s82, 2
    s_cselect_b32 s80, 1, 0
    L_pwgo:
    """)
    pw_setup(a)
    pw_loadw(a)
    a(f"""s_waitcnt vmcnt(40)
    s_add_u32 s70, s{sWAVE}, s84
    s_cmp_lg_u32 s70, 0
    s_cbranch_scc1 L_pw_arr
    s_mov_b64 exec, 1
    v_mov_b32 v20, 0
    v_mov_b32 v22, 1
    buffer_atomic_add v22, v20, s[{S_DB}:{S_DB+3}], 0 offen sc1
    s_mov_b64 exec, -1
    L_pw_arr:""")
    pw_readw(a)
    a("s_cmp_eq_u32 s80, 1\ns_cbranch_scc1 L_pwN")
    a.label("L_pwT")
    pw_main(a,'T',"L_pwTdone")
    a.label("L_pwN")
    pw_main(a,'N',"L_a2")
    a.label("L_pwTdone")
    a.label("L_a2")
    a("s_cmp_eq_u32 s84, 0\ns_cbranch_scc1 L_pwA")
    import roles_a, roles_b
    roles_a.emit(a,cfg,sys.modules[__name__])
    roles_b.emit(a,cfg,sys.modules[__name__])
    a.label("L_exit")
    a("s_endpgm")
    body=hz.fix(a.text())
    hdr=open("cdna_kernels/"+NAME+".s.ref").read().split("; Override launch")[0]
    s=hdr+f"""; @launch grid=({NWG},1,1) block=(256,1,1) lds=163840
.amdgcn_target "amdgcn-amd-amdhsa--gfx950"
.text
.globl {NAME}_kernel
.p2align 8
.type {NAME}_kernel,@function
{NAME}_kernel:
{body}
.section .rodata,"a"
.p2align 6
.amdhsa_kernel {NAME}_kernel
  .amdhsa_next_free_vgpr 512
  .amdhsa_next_free_sgpr 102
  .amdhsa_accum_offset 256
  .amdhsa_group_segment_fixed_size 0
  .amdhsa_kernarg_size 104
  .amdhsa_user_sgpr_count 2
  .amdhsa_user_sgpr_kernarg_segment_ptr 1
  .amdhsa_system_sgpr_workgroup_id_x 1
.end_amdhsa_kernel
"""
    return s

if __name__=="__main__":
    cfg=dict(CFG)
    out="cdna_kernels/"+NAME+".s"
    for arg in sys.argv[1:]:
        k,v=arg.split("=",1)
        if k=="out": out=v
        else:
            try: v=int(v)
            except: pass
            cfg[k]=v
    open(out,"w").write(build(cfg))
```
